```python
import torch

def _softmax(x, axis=-1):
    return torch.softmax(x, dim=axis)
def _gelu(x):
    return torch.nn.functional.gelu(x, approximate="tanh")
def _silu(x):
    return torch.nn.functional.silu(x)
def _sigmoid(x):
    return torch.sigmoid(x)
def _layernorm(x, axis=-1, eps=1e-5):
    m = x.mean(dim=axis, keepdim=True)
    v = x.var(dim=axis, keepdim=True, unbiased=False)
    return (x - m) / torch.sqrt(v + eps)
def _scatter_add(tgt, idx, src, axis=0):
    return tgt.clone().index_add_(axis, idx, src)
def _segment_sum(src, seg, n):
    out = torch.zeros((n,) + src.shape[1:], dtype=src.dtype)
    return out.index_add_(0, seg, src)
def _pad(x, pw):
    flat = tuple(v for pair in reversed(pw) for v in pair)
    return torch.nn.functional.pad(x, flat)

kernel_name = 'parallel_sum__softmax_full_mha__dense_activation_squared_relu__prompt'

def setup_inputs():

    _w = (lambda a: (lambda t: t.to(torch.bfloat16) if t.is_floating_point() else t)(torch.as_tensor(a)))
    def _A_setup():
        B, S, D = 1, 2048, 512
        return {
            "x": _w((lambda *s: torch.randn(*s, dtype=torch.bfloat16) * 0.05)(B, S, D)),
            "wqkv": _w((lambda *s: torch.randn(*s, dtype=torch.bfloat16) * 0.2)(D, 3 * D)),
            "wo": _w((lambda *s: torch.randn(*s, dtype=torch.bfloat16) * 0.1)(D, D)),
        }
    _A_in = _A_setup()

    def _B_setup():
        B, S, D, F = 1, 2048, 512, 1376
        return {
            "x": _w((lambda *s: torch.randn(*s, dtype=torch.bfloat16) * 0.05)(B, S, D)),
            "w1": _w((lambda *s: torch.randn(*s, dtype=torch.bfloat16) * 0.1)(D, F)),
            "b1": _w((lambda *s: torch.randn(*s, dtype=torch.bfloat16) * 0.8)(F)),
            "w2": _w((lambda *s: torch.randn(*s, dtype=torch.bfloat16) * 0.1)(F, D)),
            "b2": _w((lambda *s: torch.randn(*s, dtype=torch.bfloat16) * 12.8)(D)),
        }
    _B_in = _B_setup()

    return {
        "A_x": _A_in["x"],
        "A_wqkv": _A_in["wqkv"],
        "A_wo": _A_in["wo"],
        "B_x": _B_in["x"],
        "B_w1": _B_in["w1"],
        "B_b1": _B_in["b1"],
        "B_w2": _B_in["w2"],
        "B_b2": _B_in["b2"],
    }

def reference(A_x, A_wqkv, A_wo, B_x, B_w1, B_b1, B_w2, B_b2):
    def _A_ref(x, wqkv, wo):
        B, S, D = x.shape
        H = 32; Dh = D // H
        qkv = (lambda x, *d: x.permute(*d))((x @ wqkv).reshape(B, S, 3, H, Dh), 2, 0, 3, 1, 4)
        q, k, v = qkv[0], qkv[1], qkv[2]
        scale = Dh ** -0.5
        scores = torch.einsum("bhqd,bhkd->bhqk", q, k) * scale
        p = _softmax(scores, axis=-1)
        o = torch.einsum("bhqk,bhkd->bhqd", p, v)
        return (lambda x, *d: x.permute(*d))(o, 0, 2, 1, 3).reshape(B, S, D) @ wo

    def _B_ref(x, w1, b1, w2, b2):
        h = torch.einsum("bsd,df->bsf", x, w1) + b1
        zero = torch.zeros_like(h)
        r = torch.where(h > zero, h, zero)
        h = r * r
        out = torch.einsum("bsf,fd->bsd", h, w2) + b2
        return out

    x = A_x
    xn = _layernorm(x, axis=-1)
    return x + _A_ref(xn, A_wqkv, A_wo) + _B_ref(xn, B_w1, B_b1, B_w2, B_b2)
```

```python
import re

TRANS = ("v_exp_", "v_log_", "v_rcp_", "v_rsq_", "v_sqrt_", "v_sin_", "v_cos_")


def _regs(tok):
    tok = tok.strip()
    tok = re.sub(r"^-|^\|", "", tok)
    tok = tok.replace("|", "")
    m = re.fullmatch(r"abs\((.*)\)", tok)
    if m:
        tok = m.group(1)
    m = re.fullmatch(r"([vs])(\d+)", tok)
    if m:
        return {(m.group(1), int(m.group(2)))}
    m = re.fullmatch(r"([vs])\[(\d+):(\d+)\]", tok)
    if m:
        return {(m.group(1), i) for i in range(int(m.group(2)), int(m.group(3)) + 1)}
    if tok == "vcc":
        return {("s", "vcc")}
    if tok == "m0":
        return {("s", "m0")}
    if tok == "exec":
        return {("s", "exec")}
    return set()


class Ins:
    __slots__ = ("text", "op", "cls", "dst", "src", "a", "b", "c", "passes", "wide_data", "ws")

    def __init__(self, text):
        self.text = text
        t = text.split(";")[0].strip()
        self.dst = set()
        self.src = set()
        self.a = self.b = self.c = set()
        self.passes = 0
        self.wide_data = set()
        self.ws = 1
        if not t or t.endswith(":") or t.startswith("."):
            self.op = ""
            self.cls = "label"
            self.ws = 0
            return
        parts = t.split(None, 1)
        op = self.op = parts[0]
        rest = parts[1] if len(parts) > 1 else ""
        ops = [o.strip() for o in re.split(r",(?![^\[]*\])", rest)] if rest else []
        mods = ""
        if ops:
            mm = re.match(r"(\S+)\s*(.*)", ops[-1])
            ops[-1], mods = mm.group(1), mm.group(2)
        R = [_regs(o) for o in ops]
        if op == "s_nop":
            self.cls = "nop"
            self.ws = int(ops[0], 0) + 1
        elif op.startswith("v_mfma") or op.startswith("v_smfmac"):
            self.cls = "mfma"
            self.dst = R[0]
            self.a, self.b = R[1], R[2]
            if op.startswith("v_smfmac"):
                self.c = R[0]
                self.a = self.a | R[3]
            else:
                self.c = R[3]
            self.src = self.a | self.b | self.c
            if "32x32" in op:
                self.passes = 8
            elif "16x16" in op:
                self.passes = 4
            else:
                self.passes = 2
        elif op.startswith("v_"):
            self.cls = "valu"
            if op.startswith("v_cmp"):
                self.dst = R[0]
                self.src = set().union(*R[1:])
            elif op.startswith("v_permlane"):
                self.dst = R[0] | R[1]
                self.src = R[0] | R[1]
            else:
                self.dst = R[0]
                self.src = set().union(*R[1:]) if len(R) > 1 else set()
                if op.startswith(("v_fmac", "v_dot2c", "v_pk_fmac")):
                    self.src |= R[0]
                if op.startswith(("v_add_co", "v_sub_co", "v_addc_co")):
                    self.dst |= R[1]
        elif op.startswith("buffer_") or op.startswith("global_"):
            self.cls = "vmem"
            lds = " lds" in (" " + mods)
            if "load" in op and not lds:
                self.dst = R[0]
                self.src = set().union(*R[1:])
            else:
                self.src = set().union(*R) if R else set()
                if lds:
                    self.src |= {("s", "m0")}
                if ("store" in op) and (op.endswith("x4") or op.endswith("x3")):
                    self.wide_data = R[0] if op.startswith("buffer_") else R[1]
        elif op.startswith("ds_"):
            self.cls = "ds"
            if op.startswith("ds_read") or op.startswith("ds_bpermute") or op.startswith("ds_swizzle"):
                self.dst = R[0]
                self.src = set().union(*R[1:])
            else:
                self.src = set().union(*R)
        elif op.startswith("s_"):
            self.cls = "salu"
            if op.startswith(("s_cmp", "s_cbranch", "s_branch", "s_waitcnt", "s_barrier", "s_setprio", "s_sleep", "s_endpgm", "s_bitcmp")):
                self.src = set().union(*R) if R else set()
            else:
                self.dst = R[0] if R else set()
                self.src = set().union(*R[1:]) if len(R) > 1 else set()
        else:
            raise ValueError("unknown op " + text)


T_RAW = {2: 5, 4: 8, 8: 12, 16: 20}
T_COV = {2: 4, 4: 6, 8: 10, 16: 18}
T_WAR = {2: 1, 4: 3, 8: 7, 16: 15}


def need_ws(p, c):
    n = 0
    vd = {r for r in p.dst if r[0] == "v"}
    sd = {r for r in p.dst if r[0] == "s"}
    if p.cls == "valu":
        isdot = p.op.startswith("v_dot")
        if c.cls == "mfma" and vd & c.src:
            n = max(n, 3 if isdot else 2)
        if c.cls == "valu":
            if p.op.startswith(TRANS) and not c.op.startswith(TRANS) and vd & c.src:
                n = max(n, 1)
            if c.op.startswith("v_permlane") and vd & c.src:
                n = max(n, 2)
            if c.op.startswith(("v_readfirstlane", "v_readlane")) and vd & c.src:
                n = max(n, 1)
            if "dpp" in c.text and vd & c.src:
                n = max(n, 2)
            if sd & c.src:
                n = max(n, 2)
            if "sdwa" in p.text and vd & (c.src | c.dst):
                n = max(n, 1)
        if isdot and vd & (c.src | c.dst):
            if not (c.op == p.op and c.dst == p.dst):
                n = max(n, 3)
        if c.cls == "vmem" and sd & c.src:
            n = max(n, 5)
    if p.cls == "mfma":
        if c.cls == "mfma":
            if vd & (c.a | c.b):
                n = max(n, T_RAW[p.passes])
            if vd & c.c:
                if c.c == p.dst and c.passes == p.passes:
                    n = max(n, 2 if p.passes == 2 else 0)
                else:
                    n = max(n, T_COV[p.passes])
            elif vd & c.dst:
                n = max(n, T_COV[p.passes])
        elif c.cls in ("valu", "vmem", "ds"):
            if vd & (c.src | c.dst):
                n = max(n, T_RAW[p.passes])
            if c.cls == "valu" and p.c & c.dst:
                n = max(n, T_WAR[p.passes])
    if p.cls == "salu" and ("s", "m0") in p.dst and c.cls == "vmem" and ("s", "m0") in c.src:
        n = max(n, 1)
    if p.wide_data and p.wide_data & c.dst:
        n = max(n, 2 if c.cls in ("valu", "mfma") else 1)
    return n


def pad_hazards(lines, report=None):
    out = []
    hist = []
    for text in lines:
        c = Ins(text)
        if c.cls != "label":
            dist = 0
            need = 0
            for p in reversed(hist):
                if dist >= 20:
                    break
                r = need_ws(p, c)
                if r - dist > need:
                    need = r - dist
                dist += p.ws
            while need > 0:
                k = min(need, 16)
                nop = Ins(f"s_nop {k-1}")
                out.append("    " + nop.text)
                hist.append(nop)
                if report is not None:
                    report.append((k, text))
                need -= k
            hist.append(c)
            if len(hist) > 40:
                hist = hist[-40:]
            out.append("    " + text)
        else:
            out.append(text)
    return out


class Gen:
    def __init__(self):
        self.lines = []
        self.vm = []
        self.lg = []
        self.nlabel = 0

    def e(self, s):
        for ln in s.split("\n"):
            ln = ln.strip()
            if ln:
                self.lines.append(ln)

    def label(self, base):
        self.nlabel += 1
        return f"L_{base}_{self.nlabel}"

    def vmem(self, s, tag):
        self.e(s)
        self.vm.append(tag)

    def _n(self, fifo, pred):
        last = -1
        for i, t in enumerate(fifo):
            if pred(t):
                last = i
        return last

    def wait(self, vm=None, lg=None, force=False):
        parts = []

        def mk(x):
            if x == "all":
                return lambda t: True
            if callable(x):
                return x
            if isinstance(x, (list, set)):
                return lambda t: t in x
            return lambda t: t == x

        if vm is not None:
            last = self._n(self.vm, mk(vm))
            if last >= 0:
                n = len(self.vm) - 1 - last
                parts.append(f"vmcnt({min(n,63)})")
                self.vm = self.vm[last + 1:]
            elif force:
                parts.append("vmcnt(0)")
        if lg is not None:
            last = self._n(self.lg, mk(lg))
            if last >= 0:
                n = len(self.lg) - 1 - last
                parts.append(f"lgkmcnt({min(n,15)})")
                self.lg = self.lg[last + 1:]
            elif force:
                parts.append("lgkmcnt(0)")
        if parts:
            self.e("s_waitcnt " + " ".join(parts))

    def ds(self, s, tag):
        self.e(s)
        self.lg.append(tag)


def vr(a, n=1):
    return f"v{a}" if n == 1 else f"v[{a}:{a+n-1}]"


def sr(a, n=1):
    return f"s{a}" if n == 1 else f"s[{a}:{a+n-1}]"
```

```python
import sys, struct
from asmlib import Gen, pad_hazards, vr, sr

NAME = "parallel_sum__softmax_full_mha__dense_activation_squared_relu__prompt"

WS_TAG = 0
WS_FLAG = 0x1000
WS_PROF = 0x20000
WS_KV = 0x100000
WS_O = 0x500000
WS_H = 0x700000
WS_SIZE = 0x10000000
OOB = 0x40000000
TAG_INC = 0x9E3779B9

L_X = [i * 16384 for i in range(6)]
L_W = [98304 + i * 8192 for i in range(7)]
L_MISC = 155648
L_QX = L_W[0]
LDS_BYTES = 163840


def f32(x):
    return "0x%08x" % struct.unpack("<I", struct.pack("<f", x))[0]


class Cfg:
    prof = False
    stop = None
    s2_early = 3
    kvflag_b = 4
    nsh = 18
    codepf = True
    margin = 90.0
    force_fallback = False
    spin_max = 200000


def build(cfg):
    g = Gen()
    e = g.e
    sRB, sCB, sW, sMI, sG, sC0 = 3, 4, 5, 6, 7, 8
    sT = [9, 10, 11, 12, 13, 14, 15]
    P_X, P_WQKV, P_WO, P_W1, P_B1, P_W2, P_B2 = 16, 18, 20, 24, 26, 28, 30
    P_OUT, P_WS = 32, 34
    R_X, R_WQKV, R_W1, R_SEL, R_WS, R_W2, R_WO, R_B1, R_B2, R_OUT, R_CODE = range(36, 80, 4)
    sW1K = 80
    sW2K = 81
    sSELSTR = 82
    sVM = 84
    sLID = 86
    sKVC = 87
    sPT = 88
    sPI = 90
    sS2M0 = 91
    sHB = 92
    sOB = 93
    sCNT = 94

    def srd(r, p, size):
        e(f"s_mov_b32 s{r}, s{p}")
        e(f"s_mov_b32 s{r+1}, s{p+1}")
        e(f"s_mov_b32 s{r+2}, {size}")
        e(f"s_mov_b32 s{r+3}, 0x20000")

    nstamp = [0]
    vPROF = 127

    def stamp(name):
        if not cfg.prof:
            return
        g.wait(lg="all")
        e(f"s_memtime s[{sPT}:{sPT+1}]")
        e("s_waitcnt lgkmcnt(0)")
        e(f"v_writelane_b32 v{vPROF}, s{sPT}, {nstamp[0]}")
        cfg.stamps.append(name)
        nstamp[0] += 1

    cfg.stamps = []

    vL = 1
    vXD, vWD, vS2a, vS2b = 2, 3, 4, 5
    XA = [6, 7, 8, 9]
    WA = [10, 11, 12, 13]
    vTAG, vB1a, vB1b, vONE = 14, 15, 16, 17
    vSX, vSXX = 18, 19
    vCS = [20, 21, 22, 23]
    vMASK, vRSTD, vL16 = 24, 25, 26
    vST = 27
    RT = 28
    ACC0, ACC1 = 32, 48
    WF = 64
    T = 96
    XF = 128

    class LA:
        def __init__(self, regs, base):
            self.regs, self.base = regs, base

        def off(self, absoff, span=4096):
            if not (0 <= absoff - self.base and absoff - self.base + span <= 65536):
                d = absoff - self.base
                for r in self.regs:
                    e(f"v_add_u32 v{r}, {d & 0xffffffff}, v{r}")
                self.base = absoff
            return absoff - self.base

    e("s_cmp_ge_u32 s2, 256")
    e("s_cbranch_scc1 L_exit")
    e("s_load_dwordx16 s[16:31], s[0:1], 0")
    e(f"s_load_dwordx2 s[{P_OUT}:{P_OUT+1}], s[0:1], 64")
    e(f"s_load_dwordx2 s[{P_WS}:{P_WS+1}], s[0:1], 80")
    if cfg.prof:
        e(f"v_mov_b32 v{vPROF}, 0")
        e(f"s_memrealtime s[{sPT}:{sPT+1}]")
        e("s_waitcnt lgkmcnt(0)")
        e(f"v_writelane_b32 v{vPROF}, s{sPT}, 63")
        stamp("start")
    e(f"v_lshrrev_b32 v{T}, 6, v0")
    e(f"v_and_b32 v{vL}, 63, v0")
    e(f"v_readfirstlane_b32 s{sW}, v{T}")
    e(f"s_and_b32 s{sT[0]}, s2, 7")
    e(f"s_lshl_b32 s{sRB}, s{sT[0]}, 1")
    e(f"s_bfe_u32 s{sT[1]}, s2, 0x10003")
    e(f"s_add_u32 s{sRB}, s{sRB}, s{sT[1]}")
    e(f"s_lshr_b32 s{sCB}, s2, 4")
    e(f"s_lshl_b32 s{sT[1]}, s{sT[1]}, 2")
    e(f"s_add_u32 s{sC0}, s{sCB}, s{sT[1]}")
    e(f"s_add_u32 s{sC0}, s{sC0}, s{sT[0]}")
    e(f"s_and_b32 s{sC0}, s{sC0}, 7")
    e(f"s_and_b32 s{sMI}, s{sW}, 3")
    e(f"s_lshr_b32 s{sG}, s{sW}, 2")
    e(f"s_lshl_b32 s{sW1K}, s{sW}, 10")
    e(f"s_lshl_b32 s{sW2K}, s{sW}, 11")
    e(f"s_lshl_b32 s{sLID}, s{sRB}, 4")
    e(f"s_add_u32 s{sLID}, s{sLID}, s{sCB}")
    if cfg.codepf:
        e(f"s_getpc_b64 s[{R_CODE}:{R_CODE+1}]")
        e("L_pcref:")
        e(f"s_mov_b32 s{R_CODE+2}, L_code_end-L_pcref")
        e(f"s_mov_b32 s{R_CODE+3}, 0x20000")
        e(f"s_bfe_u32 s{sT[2]}, s2, 0x30003")
        e(f"s_lshl_b32 s{sT[2]}, s{sT[2]}, 12")
        e(f"v_lshlrev_b32 v{T+1}, 3, v0")
        g.vmem(f"buffer_load_dword v{T+2}, v{T+1}, s[{R_CODE}:{R_CODE+3}], s{sT[2]} offen", "pf")
    e(f"v_lshrrev_b32 v{T+3}, 3, v0")
    e(f"v_bfe_u32 v{T+4}, v0, 4, 3")
    e(f"v_and_b32 v{T+5}, 7, v0")
    e(f"v_xor_b32 v{T+4}, v{T+4}, v{T+5}")
    e(f"v_lshlrev_b32 v{T+4}, 4, v{T+4}")
    e(f"v_lshl_add_u32 v{vXD}, v{T+3}, 10, v{T+4}")
    e(f"s_lshl_b32 s{sT[2]}, s{sRB}, 17")
    e(f"v_add_u32 v{vXD}, s{sT[2]}, v{vXD}")
    e(f"v_bfe_u32 v{T+4}, v0, 4, 1")
    e(f"v_lshlrev_b32 v{T+4}, 2, v{T+4}")
    e(f"v_xor_b32 v{T+4}, v{T+4}, v{T+5}")
    e(f"v_lshlrev_b32 v{T+6}, 4, v{T+4}")
    e(f"v_mul_u32_u24 v{vWD}, 3072, v{T+3}")
    e(f"v_add_u32 v{vWD}, v{vWD}, v{T+6}")
    e(f"s_and_b32 s{sT[2]}, s{sCB}, 1")
    e(f"s_lshl_b32 s{sT[2]}, s{sT[2]}, 10")
    e(f"s_lshr_b32 s{sT[3]}, s{sCB}, 1")
    e(f"s_lshl_b32 s{sT[3]}, s{sT[3]}, 7")
    e(f"s_add_u32 s{sT[2]}, s{sT[2]}, s{sT[3]}")
    e(f"s_add_u32 s{sT[2]}, s{sT[2]}, 1024")
    e(f"v_add_u32 v{vWD}, s{sT[2]}, v{vWD}")
    e("s_waitcnt lgkmcnt(0)")
    srd(R_X, P_X, 2048 * 1024)
    srd(R_WQKV, P_WQKV, 512 * 3072)

    def cc(c, dst):
        e(f"s_add_u32 s{dst}, s{sC0}, {c}")
        e(f"s_and_b32 s{dst}, s{dst}, 7")

    def dma_x(c):
        slot = L_X[c % 6]
        cc(c, sT[0])
        e(f"s_lshl_b32 s{sT[1]}, s{sT[0]}, 7")
        e(f"s_add_u32 m0, s{sW1K}, {slot}")
        e(f"s_add_u32 s{sT[2]}, s{sT[1]}, 65536")
        g.vmem(f"buffer_load_dwordx4 v{vXD}, s[{R_X}:{R_X+3}], s{sT[1]} offen lds", ("s1", c))
        e(f"s_add_u32 m0, s{sW1K}, {slot+8192}")
        g.vmem(f"buffer_load_dwordx4 v{vXD}, s[{R_X}:{R_X+3}], s{sT[2]} offen lds", ("s1", c))

    def dma_w(c):
        slot = L_W[c % 7]
        cc(c, sT[0])
        e(f"s_add_u32 m0, s{sW1K}, {slot}")
        e(f"s_mul_i32 s{sT[1]}, s{sT[0]}, {64*3072}")
        g.vmem(f"buffer_load_dwordx4 v{vWD}, s[{R_WQKV}:{R_WQKV+3}], s{sT[1]} offen lds", ("s1", c))

    for c in range(6):
        dma_x(c)
        dma_w(c)
    dma_w(6)
    srd(R_W1, P_W1, 512 * 2752)
    srd(R_WS, P_WS, WS_SIZE)
    srd(R_W2, P_W2, 1376 * 1024)
    srd(R_WO, P_WO, 512 * 1024)
    srd(R_B1, P_B1, 2752)
    srd(R_B2, P_B2, 1024)
    srd(R_OUT, P_OUT, 2048 * 1024)
    e(f"s_cmp_eq_u32 s{sG}, 0")
    e(f"s_cselect_b32 s{R_SEL}, s{P_WQKV}, s{P_W1}")
    e(f"s_cselect_b32 s{R_SEL+1}, s{P_WQKV+1}, s{P_W1+1}")
    e(f"s_cselect_b32 s{R_SEL+2}, s{R_WQKV+2}, s{R_W1+2}")
    e(f"s_mov_b32 s{R_SEL+3}, 0x20000")
    e(f"s_cselect_b32 s{sT[0]}, 3072, 2752") if False else None
    e(f"s_mov_b32 s{sT[0]}, 2752")
    e(f"s_cselect_b32 s{sT[0]}, 3072, s{sT[0]}")
    e(f"s_lshl_b32 s{sSELSTR}, s{sT[0]}, 6")
    e(f"v_mov_b32 v{T+1}, 0")
    g.vmem(f"buffer_load_dword v{vTAG}, v{T+1}, s[{R_WS}:{R_WS+3}], 0 offen sc1", "tag")
    e(f"v_lshrrev_b32 v{T+1}, 2, v{vL}")
    e(f"s_lshl_b32 s{sT[1]}, s{sMI}, 4")
    e(f"v_add_u32 v{T+1}, s{sT[1]}, v{T+1}")
    e(f"v_and_b32 v{T+2}, 3, v{vL}") if False else None
    e(f"v_and_b32 v{T+4}, 3, v{vL}")
    e(f"v_lshlrev_b32 v{T+4}, 4, v{T+4}")
    e(f"v_mul_lo_u32 v{vS2a}, v{T+1}, s{sT[0]}")
    e(f"v_add_u32 v{vS2a}, v{vS2a}, v{T+4}")
    e(f"v_mul_u32_u24 v{vS2b}, 2752, v{T+1}")
    e(f"v_add_u32 v{vS2b}, v{vS2b}, v{T+4}")
    sFA, sFB = 95, 96
    e(f"s_mul_i32 s{sT[1]}, s{sCB}, 3")
    e(f"s_add_u32 s{sFA}, s{sT[1]}, 1")
    e(f"s_lshl_b32 s{sT[2]}, s{sG}, 1")
    e(f"s_add_u32 s{sFB}, s{sT[1]}, s{sT[2]}")
    e(f"s_lshl_b32 s{sT[3]}, s{sFA}, 6")
    e(f"s_cmp_ge_u32 s{sFA}, 43")
    e(f"s_cselect_b32 s{sT[3]}, {OOB}, s{sT[3]}")
    e(f"s_lshl_b32 s{sT[4]}, s{sCB}, 6")
    e(f"s_cmp_eq_u32 s{sG}, 0")
    e(f"s_cselect_b32 s{sT[4]}, s{sT[4]}, s{sT[3]}")
    e(f"s_cselect_b32 s{sT[3]}, {OOB}, s{sT[3]}")
    e(f"v_add_u32 v{vS2a}, s{sT[4]}, v{vS2a}")
    e(f"s_lshl_b32 s{sT[5]}, s{sFB}, 6")
    e(f"s_cmp_ge_u32 s{sFB}, 43")
    e(f"s_cselect_b32 s{sT[5]}, {OOB}, s{sT[5]}")
    e(f"v_add_u32 v{vS2b}, s{sT[5]}, v{vS2b}")
    e(f"v_and_b32 v{T+1}, 31, v{vL}")
    e(f"v_lshlrev_b32 v{T+1}, 1, v{T+1}")
    g.vmem(f"buffer_load_ushort v{vB1a}, v{T+1}, s[{R_B1}:{R_B1+3}], s{sT[3]} offen", "b1")
    g.vmem(f"buffer_load_ushort v{vB1b}, v{T+1}, s[{R_B1}:{R_B1+3}], s{sT[5]} offen", "b1")
    e(f"s_lshl_b32 s{sS2M0}, s{sG}, 13")
    e(f"s_lshl_b32 s{sT[1]}, s{sMI}, 10")
    e(f"s_add_u32 s{sS2M0}, s{sS2M0}, s{sT[1]}")
    vUD = 126
    e(f"v_lshl_add_u32 v{vUD}, v{T+3}, 10, v{T+6}")
    e(f"s_lshr_b32 s{sT[1]}, s{sCB}, 1")
    e(f"s_lshl_b32 s{sT[1]}, s{sT[1]}, 7")
    e(f"v_add_u32 v{vUD}, s{sT[1]}, v{vUD}")
    sROT = 97
    e(f"s_lshl_b32 s{sROT}, s{sG}, 1")
    e(f"s_add_u32 s{sROT}, s{sROT}, s{sMI}")
    e(f"v_and_b32 v{T+1}, 31, v{vL}")
    e(f"s_lshl_b32 s{sT[1]}, s{sMI}, 5")
    e(f"v_add_u32 v{T+1}, s{sT[1]}, v{T+1}")
    e(f"v_bfe_u32 v{T+4}, v{vL}, 1, 3")
    e(f"v_lshrrev_b32 v{T+5}, 5, v{vL}")
    e(f"v_xor_b32 v{T+4}, v{T+4}, v{T+5}")
    e(f"v_bfe_u32 v{T+7}, v{vL}, 2, 2")
    e(f"v_lshl_add_u32 v{T+8}, v{T+5}, 3, v{T+7}")
    e(f"v_and_b32 v{T+9}, 3, v{vL}")
    e(f"v_lshlrev_b32 v{T+9}, 3, v{T+9}")
    e(f"v_bfe_u32 v{T+10}, v{vL}, 4, 1")
    e(f"v_lshl_add_u32 v{T+9}, v{T+10}, 5, v{T+9}")
    e(f"v_bfe_u32 v{T+10}, v{vL}, 3, 1")
    e(f"v_xor_b32 v{T+11}, s{sG}, v{T+10}")
    e(f"v_lshl_add_u32 v{T+11}, v{T+11}, 6, v{T+9}")
    e(f"v_lshl_add_u32 v{T+11}, v{T+8}, 7, v{T+11}")
    e(f"v_add_u32 v{T+11}, {L_W[0]}, v{T+11}")
    vW2L = 125
    e(f"v_lshl_add_u32 v{vW2L}, v{T+8}, 6, v{T+9}")
    e(f"s_lshl_b32 s{sT[1]}, s{sG}, 13")
    e(f"v_add_u32 v{vW2L}, s{sT[1]}, v{vW2L}")
    vUA = [123, 124]
    e(f"v_lshl_add_u32 v{T+12}, v{T+5}, 2, v{T+7}")
    e(f"s_lshr_b32 s{sT[1]}, s{sW}, 1")
    e(f"s_lshl_b32 s{sT[1]}, s{sT[1]}, 4")
    e(f"v_add_u32 v{T+12}, s{sT[1]}, v{T+12}")
    e(f"v_lshl_add_u32 v{vUA[0]}, v{T+10}, 6, v{T+9}")
    e(f"v_lshl_add_u32 v{vUA[0]}, v{T+12}, 7, v{vUA[0]}")
    e(f"v_xor_b32 v{vUA[1]}, 64, v{vUA[0]}")
    for i in range(4):
        e(f"s_add_u32 s{sT[1]}, s{sROT}, {i}")
        e(f"s_and_b32 s{sT[1]}, s{sT[1]}, 3")
        e(f"s_lshl_b32 s{sT[2]}, s{sT[1]}, 1")
        e(f"v_xor_b32 v{XA[i]}, s{sT[2]}, v{T+4}")
        e(f"v_lshlrev_b32 v{XA[i]}, 4, v{XA[i]}")
        e(f"v_lshl_add_u32 v{XA[i]}, v{T+1}, 7, v{XA[i]}")
        e(f"s_lshl_b32 s{sT[2]}, s{sT[1]}, 11")
        e(f"v_add_u32 v{WA[i]}, s{sT[2]}, v{T+11}")
    e(f"v_mov_b32 v{vONE}, 0x3f803f80")
    e(f"v_mov_b32 v{vSX}, 0")
    e(f"v_mov_b32 v{vSXX}, 0")
    for r in vCS:
        e(f"v_mov_b32 v{r}, 0")
    e(f"v_subrev_u32 v{vMASK}, 1, v{T+5}")
    e(f"v_lshlrev_b32 v{vL16}, 4, v{vL}")
    e(f"s_mov_b32 s{sVM}, 0xffff")
    e(f"s_mov_b32 s{sVM+1}, 0xffff")
    MSK = sT[6]
    e(f"s_mov_b32 s{MSK}, 0xffff0000")

    S2SLOT = [L_X[2], L_X[3], L_W[1], L_X[4], L_W[3], L_X[5], L_W[5], L_W[1]]

    def dma_s2(j):
        slot = S2SLOT[j]
        cc(j, sT[0])
        e(f"s_add_u32 m0, s{sS2M0}, {slot}")
        e(f"s_mul_i32 s{sT[1]}, s{sT[0]}, s{sSELSTR}")
        e(f"s_mul_i32 s{sT[2]}, s{sT[0]}, {64*2752}")
        g.vmem(f"buffer_load_dwordx4 v{vS2a}, s[{R_SEL}:{R_SEL+3}], s{sT[1]} offen lds", ("s2", j))
        e(f"s_add_u32 m0, s{sS2M0}, {slot+4096}")
        g.vmem(f"buffer_load_dwordx4 v{vS2b}, s[{R_W1}:{R_W1+3}], s{sT[2]} offen lds", ("s2", j))

    def colsum(frag, acc):
        ops = []
        for r in range(4):
            ops.append(f"v_and_b32 v{T+2*r}, s{MSK}, v{frag+r}")
            ops.append(f"v_lshlrev_b32 v{T+2*r+1}, 16, v{frag+r}")
            ops.append(f"v_add_f32 v{acc}, v{acc}, v{T+2*r}")
            ops.append(f"v_add_f32 v{acc+1}, v{acc+1}, v{T+2*r+1}")
        return ops

    stamp("prologue")
    e(f"s_bitcmp1_b32 s{sCB}, 0")
    e("s_cbranch_scc1 L_s1_V")
    vm0, lg0, ns0 = list(g.vm), list(g.lg), nstamp[0]
    st0 = list(cfg.stamps)
    s2_free = {0: 3, 1: 4, 2: 3, 3: 5, 4: 5, 5: 6, 6: 7}
    for variant in ("K", "V"):
        g.vm, g.lg, nstamp[0] = list(vm0), list(lg0), ns0
        cfg.stamps[:] = st0
        if variant == "V":
            e("L_s1_V:")
        xa = LA(XA, 0)
        issued = 0
        for c in range(8):
            g.wait(vm=("s1", c), lg="all")
            e("s_barrier")
            if c == 0:
                stamp("c0 landed")
            if c == 1:
                dma_x(6)
                dma_w(7)
            if c == 2:
                dma_x(7)
            while issued < cfg.s2_early and s2_free[issued] <= c and c >= 8 - cfg.s2_early + issued - 0 - 2:
                dma_s2(issued)
                issued += 1
            xo = xa.off(L_X[c % 6], 16384)
            wo = L_W[c % 7] - L_W[0]
            for i in (0, 1):
                g.ds(f"ds_read_b128 {vr(XF+16*c+4*i,4)}, v{XA[i]} offset:{xo}", ("x", i))
            for i in range(4):
                g.ds(f"ds_read_b64_tr_b16 {vr(WF+4*i,2)}, v{WA[i]} offset:{wo}", ("w", i))
                g.ds(f"ds_read_b64_tr_b16 {vr(WF+4*i+2,2)}, v{WA[i]} offset:{wo+512}", ("w", i))
                if i in (0, 1):
                    g.ds(f"ds_read_b128 {vr(XF+16*c+4*(i+2),4)}, v{XA[i+2]} offset:{xo}", ("x", i + 2))
            for i in (0, 1):
                g.wait(lg=("x", i))
                for r in range(4):
                    x = XF + 16 * c + 4 * i + r
                    e(f"v_dot2c_f32_bf16 v{vSXX}, v{x}, v{x}")
                    e(f"v_dot2c_f32_bf16 v{vSX}, v{x}, v{vONE}")
            cs = colsum(WF, vCS[0])
            for i in range(4):
                g.wait(lg=[("w", i), ("x", i)])
                a, b = vr(WF + 4 * i, 4), vr(XF + 16 * c + 4 * i, 4)
                if variant == "V":
                    a, b = b, a
                cin = "0" if (c == 0 and i == 0) else vr(ACC0, 16)
                e(f"v_mfma_f32_32x32x16_bf16 {vr(ACC0,16)}, {a}, {b}, {cin}")
                k = {0: cs[0:6], 1: cs[6:11], 2: cs[11:16], 3: []}[i]
                for o in k:
                    e(o)
        while issued < cfg.s2_early:
            dma_s2(issued)
            issued += 1
        stamp("s1 mfma done")
        L_SX, L_SXX, L_CS = L_MISC, L_MISC + 2048, L_MISC + 4096
        e(f"v_add_f32 v{vCS[0]}, v{vCS[0]}, v{vCS[1]}")
        e(f"v_and_b32 v{T}, 31, v{vL}")
        e(f"v_lshrrev_b32 v{T+1}, 5, v{vL}")
        e(f"s_lshl_b32 s{sT[0]}, s{sMI}, 9")
        e(f"s_add_u32 s{sT[0]}, s{sT[0]}, {L_SX}")
        e(f"v_lshl_add_u32 v{T+2}, v{T}, 4, s{sT[0]}")
        e(f"s_lshl_b32 s{sT[1]}, s{sG}, 3")
        e(f"v_lshl_add_u32 v{T+3}, v{T+1}, 2, v{T+2}")
        e(f"v_add_u32 v{T+3}, s{sT[1]}, v{T+3}")
        e(f"s_lshl_b32 s{sT[0]}, s{sG}, 10")
        e(f"s_add_u32 s{sT[0]}, s{sT[0]}, {L_CS}")
        e(f"v_lshl_add_u32 v{T+4}, v{T}, 5, s{sT[0]}")
        e(f"s_lshl_b32 s{sT[1]}, s{sMI}, 3")
        e(f"v_lshl_add_u32 v{T+5}, v{T+1}, 2, v{T+4}")
        e(f"v_add_u32 v{T+5}, s{sT[1]}, v{T+5}")
        g.ds(f"ds_write_b32 v{T+3}, v{vSX}", "st")
        g.ds(f"ds_write_b32 v{T+3}, v{vSXX} offset:2048", "st")
        g.ds(f"ds_write_b32 v{T+5}, v{vCS[0]}", "st")
        g.wait(lg="all")
        e("s_barrier")
        g.ds(f"ds_read_b128 {vr(WF,4)}, v{T+2}", "sx")
        g.ds(f"ds_read_b128 {vr(WF+4,4)}, v{T+2} offset:2048", "sxx")
        g.ds(f"ds_read_b128 {vr(WF+8,4)}, v{T+4}", "cs")
        g.ds(f"ds_read_b128 {vr(WF+12,4)}, v{T+4} offset:16", "cs")
        e(f"s_and_b32 s{sT[0]}, s{sCB}, 14")
        e(f"s_add_u32 s{sT[0]}, s{sT[0]}, s{sG}")
        e(f"s_lshl_b32 s{sT[0]}, s{sT[0]}, 4")
        e(f"s_add_u32 s{sT[0]}, s{sT[0]}, s{sRB}")
        e(f"s_lshl_b32 s{sT[0]}, s{sT[0]}, 4")
        e(f"s_add_u32 s{sT[0]}, s{sT[0]}, s{sMI}")
        e(f"s_lshl_b32 s{sT[0]}, s{sT[0]}, 10")
        if variant == "K":
            e(f"s_add_u32 s{sT[0]}, s{sT[0]}, {WS_KV}")
            e(f"s_add_u32 s{sT[1]}, s{sT[0]}, 4096")
            e(f"v_and_b32 v{vST}, 0x33, v{vL}")
            e(f"v_bfe_u32 v{T+6}, v{vL}, 2, 1")
            e(f"v_lshl_or_b32 v{vST}, v{T+6}, 3, v{vST}")
            e(f"v_bfe_u32 v{T+6}, v{vL}, 3, 1")
            e(f"v_lshl_or_b32 v{vST}, v{T+6}, 2, v{vST}")
            e(f"v_lshlrev_b32 v{vST}, 4, v{vST}")
        else:
            e(f"s_add_u32 s{sT[0]}, s{sT[0]}, {WS_KV+8192}")
            e(f"s_add_u32 s{sT[1]}, s{sT[0]}, 512")
            e(f"v_and_b32 v{vST}, 15, v{vL}")
            e(f"v_lshlrev_b32 v{vST}, 4, v{vST}")
            e(f"v_lshl_or_b32 v{vST}, v{T+1}, 8, v{vST}")
            e(f"v_bfe_u32 v{T+6}, v{vL}, 4, 1")
            e(f"v_lshl_or_b32 v{vST}, v{T+6}, 12, v{vST}")
        g.wait(lg="sx")
        e(f"v_add_f32 v{WF}, v{WF}, v{WF+1}")
        e(f"v_add_f32 v{WF+2}, v{WF+2}, v{WF+3}")
        e(f"v_add_f32 v{WF}, v{WF}, v{WF+2}")
        e(f"v_mul_f32 v{T+8}, {f32(-1.0/512)}, v{WF}")
        g.wait(lg="sxx")
        e(f"v_add_f32 v{WF+4}, v{WF+4}, v{WF+5}")
        e(f"v_add_f32 v{WF+6}, v{WF+6}, v{WF+7}")
        e(f"v_add_f32 v{WF+4}, v{WF+4}, v{WF+6}")
        e(f"v_mul_f32 v{T+9}, {f32(1.0/512)}, v{WF+4}")
        e(f"v_fma_f32 v{T+9}, -v{T+8}, v{T+8}, v{T+9}")
        e(f"v_max_f32 v{T+9}, 0, v{T+9}")
        e(f"v_add_f32 v{T+9}, {f32(1e-5)}, v{T+9}")
        e(f"v_rsq_f32 v{vRSTD}, v{T+9}")
        e(f"v_cvt_pk_bf16_f32 v{T+10}, v{T+8}, v{T+8}")
        e(f"v_mul_f32 v{T+9}, v{T+9}, v{vRSTD}")
        e(f"v_and_b32 v{T+10}, s{MSK}, v{T+10}")
        e(f"v_sub_f32 v{T+10}, v{T+8}, v{T+10}")
        e(f"v_cvt_pk_bf16_f32 v{RT}, v{T+8}, v{T+10}")
        e(f"v_cvt_pk_bf16_f32 v{RT+1}, v{T+8}, 0")
        e(f"v_cvt_pk_bf16_f32 v{T+10}, v{T+9}, v{T+9}")
        e(f"v_and_b32 v{T+10}, s{MSK}, v{T+10}")
        e(f"v_sub_f32 v{T+10}, v{T+9}, v{T+10}")
        e(f"v_cvt_pk_bf16_f32 v{RT+2}, v{T+9}, v{T+10}")
        e(f"v_mov_b32 v{RT+3}, 0")
        for r in range(3):
            e(f"v_and_b32 v{RT+r}, v{vMASK}, v{RT+r}")
        CF = T + 12
        g.wait(lg="cs")
        e(f"v_add_f32 v{WF+8}, v{WF+8}, v{WF+9}")
        e(f"v_add_f32 v{WF+10}, v{WF+10}, v{WF+11}")
        e(f"v_add_f32 v{WF+12}, v{WF+12}, v{WF+13}")
        e(f"v_add_f32 v{WF+14}, v{WF+14}, v{WF+15}")
        e(f"v_add_f32 v{WF+8}, v{WF+8}, v{WF+10}")
        e(f"v_add_f32 v{WF+12}, v{WF+12}, v{WF+14}")
        e(f"v_add_f32 v{WF+8}, v{WF+8}, v{WF+12}")
        e(f"v_cvt_pk_bf16_f32 v{CF}, v{WF+8}, v{WF+8}")
        e(f"v_mov_b32 v{CF+2}, 0")
        e(f"v_and_b32 v{T+10}, s{MSK}, v{CF}")
        e(f"v_sub_f32 v{T+10}, v{WF+8}, v{T+10}")
        e(f"v_cvt_pk_bf16_f32 v{CF+1}, v{T+10}, 0")
        e(f"v_mov_b32 v{CF+3}, 0")
        if variant == "K":
            e(f"v_mfma_f32_32x32x16_bf16 {vr(ACC0,16)}, {vr(CF,4)}, {vr(RT,4)}, {vr(ACC0,16)}")
            for r in vCS:
                e(f"v_mov_b32 v{r}, 0")
            for r in range(16):
                e(f"v_mul_f32 v{ACC0+r}, v{vRSTD}, v{ACC0+r}")
        else:
            RS = T + 16
            e(f"v_cvt_pk_bf16_f32 v{T+10}, v{vRSTD}, v{vRSTD}")
            e(f"v_and_b32 v{T+10}, s{MSK}, v{T+10}")
            e(f"v_sub_f32 v{T+10}, v{vRSTD}, v{T+10}")
            e(f"v_mfma_f32_32x32x16_bf16 {vr(ACC0,16)}, {vr(RT,4)}, {vr(CF,4)}, {vr(ACC0,16)}")
            e(f"v_cvt_pk_bf16_f32 v{RS}, v{vRSTD}, v{T+10}")
            e(f"v_and_b32 v{RS}, v{vMASK}, v{RS}")
            for r in range(1, 4):
                e(f"v_mov_b32 v{RS+r}, 0")
            e(f"v_mov_b32 v{RS+4}, v{vONE}")
            for r in range(5, 8):
                e(f"v_mov_b32 v{RS+r}, 0")
            e(f"v_mfma_f32_32x32x16_bf16 {vr(ACC1,16)}, {vr(RS,4)}, {vr(RS+4,4)}, 0")
            for r in vCS:
                e(f"v_mov_b32 v{r}, 0")
            for r in range(16):
                e(f"v_mul_f32 v{ACC0+r}, v{ACC1+r}, v{ACC0+r}")
        PK = T + 16
        for h in range(2):
            for r in range(4):
                e(f"v_cvt_pk_bf16_f32 v{PK+4*h+r}, v{ACC0+8*h+2*r}, v{ACC0+8*h+2*r+1}")
            g.vmem(f"buffer_store_dwordx4 {vr(PK+4*h,4)}, v{vST}, s[{R_WS}:{R_WS+3}], s{sT[h]} offen sc1", "kvst")
        if variant == "K":
            e("s_branch L_s1_done")
    e("L_s1_done:")
    e("s_nop 1")
    stamp("kv stored")

    def flag_store(kind, tag):
        e(f"s_lshl_b32 s{sT[0]}, s{sLID}, 7")
        e(f"s_add_u32 s{sT[0]}, s{sT[0]}, {WS_FLAG + kind*32768}")
        g.vmem(f"buffer_store_dword v{vTAG}, v{vFST}, s[{R_WS}:{R_WS+3}], s{sT[0]} offen sc1", tag)

    vFST = 122
    e(f"v_cmp_eq_u32 vcc, 0, v0")
    e(f"v_mov_b32 v{vFST}, {OOB}")
    e(f"v_cndmask_b32 v{vFST}, v{vFST}, 0, vcc")
    g.wait(vm="tag")
    e(f"v_add_u32 v{vTAG}, {TAG_INC}, v{vTAG}")

    for j in range(cfg.s2_early, 7):
        dma_s2(j)
    for i in range(4):
        e(f"s_add_u32 s{sT[1]}, s{sROT}, {i}")
        e(f"s_and_b32 s{sT[1]}, s{sT[1]}, 3")
        e(f"s_lshl_b32 s{sT[2]}, s{sT[1]}, 10")
        e(f"v_add_u32 v{WA[i]}, s{sT[2]}, v{vW2L}")
    was = [LA([WA[i]], 0) for i in range(4)]

    def s2_barrier(j):
        tags = [("s2", j)]
        if j == cfg.kvflag_b:
            tags.append("kvst")
        g.wait(vm=tags)
        e("s_barrier")
        if j == cfg.kvflag_b:
            flag_store(0, "flag0")
        if j == 4:
            dma_s2(7)

    def s2_reads(n):
        j, i = divmod(n, 4)
        o = was[i].off(S2SLOT[j], 16384)
        f = WF + 8 * (n % 4)
        for tt in range(2):
            for u in range(2):
                g.ds(f"ds_read_b64_tr_b16 {vr(f+4*tt+2*u,2)}, v{WA[i]} offset:{o+4096*tt+256*u}", ("w2", n, tt))

    s2_barrier(0)
    s2_reads(0)
    s2_reads(1)
    pend = []
    for n in range(32):
        j, i = divmod(n, 4)
        if n + 2 < 32:
            if (n + 2) % 4 == 0:
                s2_barrier((n + 2) // 4)
            s2_reads(n + 2)
        f = WF + 8 * (n % 4)
        for tt in range(2):
            acc = (ACC0, ACC1)[tt]
            g.wait(lg=("w2", n, tt))
            cin = "0" if n == 0 else vr(acc, 16)
            e(f"v_mfma_f32_32x32x16_bf16 {vr(acc,16)}, {vr(f+4*tt,4)}, {vr(XF+4*n,4)}, {cin}")
            if i == 0:
                pend += colsum(f + 4 * tt, vCS[2 * tt])
            k = 8
            for o in pend[:k]:
                e(o)
            pend = pend[k:]
    assert not pend
    stamp("s2 mfma done")
    L_CS2 = L_MISC
    e(f"v_add_f32 v{vCS[0]}, v{vCS[0]}, v{vCS[1]}")
    e(f"v_add_f32 v{vCS[2]}, v{vCS[2]}, v{vCS[3]}")
    e(f"v_and_b32 v{T}, 31, v{vL}")
    e(f"v_lshrrev_b32 v{T+1}, 5, v{vL}")
    e(f"s_lshl_b32 s{sT[0]}, s{sG}, 11")
    e(f"s_add_u32 s{sT[0]}, s{sT[0]}, {L_CS2}")
    e(f"v_lshl_add_u32 v{T+4}, v{T}, 5, s{sT[0]}")
    e(f"s_lshl_b32 s{sT[1]}, s{sMI}, 3")
    e(f"v_lshl_add_u32 v{T+5}, v{T+1}, 2, v{T+4}")
    e(f"v_add_u32 v{T+5}, s{sT[1]}, v{T+5}")
    g.ds(f"ds_write_b32 v{T+5}, v{vCS[0]}", "st")
    g.ds(f"ds_write_b32 v{T+5}, v{vCS[2]} offset:1024", "st")

    vPA, vPV = T + 6, T + 7

    def poll(addr, kind, name):
        lp, ok = g.label("poll"), g.label("pollok")
        e(f"s_mov_b32 s{sT[3]}, {WS_FLAG + kind*32768}")
        e(f"s_mov_b32 s{sCNT}, {cfg.spin_max}")
        e(f"{lp}:")
        e(f"buffer_load_dword v{vPV}, v{addr}, s[{R_WS}:{R_WS+3}], s{sT[3]} offen sc1")
        e("s_waitcnt vmcnt(0)")
        e(f"v_cmp_ne_u32 vcc, v{vPV}, v{vTAG}")
        e(f"s_cbranch_vccz {ok}")
        e("s_sleep 4")
        e(f"s_sub_u32 s{sCNT}, s{sCNT}, 1")
        e(f"s_cbranch_scc0 {lp}")
        e(f"{ok}:")
        g.vm = []

    if cfg.stop != "s2":
        e(f"v_and_b32 v{vPA}, 15, v{vL}")
        e(f"v_bfe_u32 v{vPV}, v{vL}, 4, 1")
        e(f"v_lshl_add_u32 v{vPA}, v{vPA}, 4, v{vPV}")
        e(f"s_and_b32 s{sT[0]}, s{sCB}, 14")
        e(f"v_add_u32 v{vPA}, s{sT[0]}, v{vPA}")
        e(f"v_lshlrev_b32 v{vPA}, 7, v{vPA}")
        poll(vPA, 0, "kv")
    stamp("kv flags seen")
    e(f"s_lshl_b32 s{sKVC}, s{sCB}, 18")
    e(f"s_add_u32 s{sKVC}, s{sKVC}, {WS_KV}")
    e(f"s_add_u32 s{sKVC}, s{sKVC}, s{sW2K}")

    def dma_kv(c):
        slot = L_X[c % 4]
        e(f"s_add_u32 s{sT[0]}, s{sRB}, {c}")
        e(f"s_and_b32 s{sT[0]}, s{sT[0]}, 15")
        e(f"s_lshl_b32 s{sT[0]}, s{sT[0]}, 14")
        e(f"s_add_u32 m0, s{sW2K}, {slot}")
        e(f"s_add_u32 s{sT[0]}, s{sT[0]}, s{sKVC}")
        g.vmem(f"buffer_load_dwordx4 v{vL16}, s[{R_WS}:{R_WS+3}], s{sT[0]} offen sc1 lds", ("kv", c))
        g.vmem(f"buffer_load_dwordx4 v{vL16}, s[{R_WS}:{R_WS+3}], s{sT[0]} offen offset:1024 sc1 lds", ("kv", c))

    if cfg.stop != "s2":
        for c in range(3):
            dma_kv(c)
    g.wait(lg="all")
    e("s_barrier")
    for tt in range(2):
        g.ds(f"ds_read_b128 {vr(WF+8*tt,4)}, v{T+4} offset:{1024*tt}", ("cs", tt))
        g.ds(f"ds_read_b128 {vr(WF+8*tt+4,4)}, v{T+4} offset:{1024*tt+16}", ("cs", tt))
    e(f"s_lshl_b32 s{sT[0]}, s{sRB}, 2")
    e(f"s_add_u32 s{sT[0]}, s{sT[0]}, s{sMI}")
    e(f"s_mul_i32 s{sT[0]}, s{sT[0]}, {86*1024}")
    e(f"s_add_u32 s{sT[0]}, s{sT[0]}, {WS_H}")
    for k, sf in ((1, sFA), (2, sFB)):
        e(f"s_lshl_b32 s{sT[k]}, s{sf}, 11")
        e(f"s_add_u32 s{sT[k]}, s{sT[k]}, s{sT[0]}")
        e(f"s_cmp_ge_u32 s{sf}, 43")
        e(f"s_cselect_b32 s{sT[k]}, {OOB}, s{sT[k]}")
    e(f"s_cmp_eq_u32 s{sG}, 0")
    e(f"s_cselect_b32 s{sT[1]}, {OOB}, s{sT[1]}")
    for tt in range(2):
        w = WF + 8 * tt
        CF = T + 12 + 4 * tt
        g.wait(lg=("cs", tt))
        e(f"v_add_f32 v{w}, v{w}, v{w+1}")
        e(f"v_add_f32 v{w+2}, v{w+2}, v{w+3}")
        e(f"v_add_f32 v{w+4}, v{w+4}, v{w+5}")
        e(f"v_add_f32 v{w+6}, v{w+6}, v{w+7}")
        e(f"v_add_f32 v{w}, v{w}, v{w+2}")
        e(f"v_add_f32 v{w+4}, v{w+4}, v{w+6}")
        e(f"v_add_f32 v{w}, v{w}, v{w+4}")
        b = (vB1a, vB1b)[tt]
        e(f"v_cvt_pk_bf16_f32 v{CF}, v{w}, v{w}")
        e(f"v_lshl_or_b32 v{CF+2}, v{b}, 16, v{b}")
        e(f"v_and_b32 v{T+10}, s{MSK}, v{CF}")
        e(f"v_sub_f32 v{T+10}, v{w}, v{T+10}")
        e(f"v_cvt_pk_bf16_f32 v{CF+1}, v{T+10}, 0")
        e(f"v_mov_b32 v{CF+3}, 0")
        acc = (ACC0, ACC1)[tt]
        e(f"v_mfma_f32_32x32x16_bf16 {vr(acc,16)}, {vr(CF,4)}, {vr(RT,4)}, {vr(acc,16)}")

    def f_epilogue(acc, pk, soff):
        for h in range(2):
            for r in range(8):
                x = acc + 8 * h + r
                e(f"v_max_f32 v{x}, 0, v{x}")
                e(f"v_mul_f32 v{x}, v{vRSTD}, v{x}")
                e(f"v_mul_f32 v{x}, v{x}, v{x}")
            for r in range(4):
                e(f"v_cvt_pk_bf16_f32 v{pk+4*h+r}, v{acc+8*h+2*r}, v{acc+8*h+2*r+1}")
            g.vmem(f"buffer_store_dwordx4 {vr(pk+4*h,4)}, v{vL16}, s[{R_WS}:{R_WS+3}], s{soff} offen offset:{1024*h} sc1", "hst")

    e(f"s_cmp_eq_u32 s{sG}, 0")
    e("s_cbranch_scc0 L_s2_F")
    vm0 = list(g.vm)
    e(f"v_mul_f32 v{T}, {f32(0.25*1.4426950408889634)}, v{vRSTD}")
    e(f"s_lshl_b32 s{sT[3]}, s{sMI}, 10")
    e(f"s_add_u32 s{sT[3]}, s{sT[3]}, {L_QX}")
    e(f"v_add_u32 v{T+1}, s{sT[3]}, v{vL16}")
    for r in range(16):
        e(f"v_mul_f32 v{ACC0+r}, v{T}, v{ACC0+r}")
    for h in range(2):
        for r in range(4):
            e(f"v_cvt_pk_bf16_f32 v{WF+4*h+r}, v{ACC0+8*h+2*r}, v{ACC0+8*h+2*r+1}")
        e(f"ds_write_b128 v{T+1}, {vr(WF+4*h,4)} offset:{4096*h}")
        g.vmem(f"buffer_store_dwordx4 {vr(WF+4*h,4)}, v{vL16}, s[{R_WS}:{R_WS+3}], s{sT[1]} offen sc1", "hst")
    e("s_branch L_s2_J")
    e("L_s2_F:")
    e("s_nop 7")
    g.vm = vm0
    f_epilogue(ACC0, WF, sT[1])
    e("L_s2_J:")
    f_epilogue(ACC1, WF + 8, sT[2])
    stamp("s2 done")

    if cfg.stop == "s2":
        e("s_waitcnt lgkmcnt(0)")
        e("s_barrier")
        e(f"s_add_u32 s{sT[3]}, s{sW1K}, {L_QX}")
        e(f"v_add_u32 v{T+1}, s{sT[3]}, v{vL16}")
        e(f"ds_read_b128 {vr(T+4,4)}, v{T+1}")
        e(f"s_lshl_b32 s{sT[0]}, s{sRB}, 2")
        e(f"s_add_u32 s{sT[0]}, s{sT[0]}, s{sMI}")
        e(f"s_lshl_b32 s{sT[0]}, s{sT[0]}, 5")
        e(f"s_lshl_b32 s{sT[1]}, s{sCB}, 1")
        e(f"s_add_u32 s{sT[0]}, s{sT[0]}, s{sT[1]}")
        e(f"s_add_u32 s{sT[0]}, s{sT[0]}, s{sG}")
        e(f"s_lshl_b32 s{sT[0]}, s{sT[0]}, 10")
        e(f"s_add_u32 s{sT[0]}, s{sT[0]}, {WS_O}")
        e("s_waitcnt lgkmcnt(0)")
        e(f"buffer_store_dwordx4 {vr(T+4,4)}, v{vL16}, s[{R_WS}:{R_WS+3}], s{sT[0]} offen")
        e("s_branch L_finish")

    Q = 128
    NM = 132
    OA = 148
    S = [164, 180]
    KF = [196, 200]
    VF = [204, 212]
    vKA, vVA, vIDX = 220, 221, 222
    UACC = [32, 48]
    UW = [64, 68, 72, 76]
    HF0 = 224
    NHF = 8
    vXR, vB2R = 80, 84
    vHD = 2
    vPA, vPV = 3, 4
    vOUT = 5

    e(f"s_lshl_b32 s{sT[0]}, s{sG}, 12")
    e(f"v_add_u32 v{vKA}, s{sT[0]}, v{vL16}")
    e(f"v_and_b32 v{vVA}, 15, v{vL}")
    e(f"v_lshlrev_b32 v{vVA}, 4, v{vVA}")
    e(f"v_lshrrev_b32 v{T}, 5, v{vL}")
    e(f"v_lshl_or_b32 v{vVA}, v{T}, 8, v{vVA}")
    e(f"s_add_u32 s{sT[0]}, s{sT[0]}, 8192")
    e(f"v_add_u32 v{vVA}, s{sT[0]}, v{vVA}")
    e(f"v_mov_b32 v{vIDX}, 0xdddddddd")
    e(f"v_and_b32 v{T}, 27, v{vL}")
    e(f"v_cmp_eq_u32 vcc, 16, v{T}")
    e(f"v_cndmask_b32 v{T}, 0, v{vONE}, vcc")
    for r in range(16):
        e(f"v_mov_b32 v{VF[0]+r}, v{T}")
    for r in range(16):
        e(f"v_mov_b32 v{OA+r}, 0")
    e(f"s_add_u32 s{sT[3]}, s{sW1K}, {L_QX}")
    e(f"v_add_u32 v{T+1}, s{sT[3]}, v{vL16}")
    e(f"s_and_b32 s{sT[0]}, s{sCB}, 1")
    e(f"s_lshl_b32 s{sT[0]}, s{sT[0]}, 1")
    e(f"s_lshl_b32 s{sT[1]}, s{sRB}, 2")
    e(f"s_add_u32 s{sT[0]}, s{sT[0]}, s{sT[1]}")
    e(f"s_lshl_b32 s{sT[4]}, s{sT[0]}, 15")
    e(f"s_and_b32 s{sT[1]}, s{sW}, 1")
    e(f"s_add_u32 s{sT[0]}, s{sT[0]}, s{sT[1]}")
    e(f"s_lshr_b32 s{sT[1]}, s{sW}, 1")
    e(f"s_mul_i32 s{sHB}, s{sT[0]}, 86")
    e(f"s_add_u32 s{sHB}, s{sHB}, s{sT[1]}")
    e(f"s_lshl_b32 s{sHB}, s{sHB}, 10")
    e(f"s_add_u32 s{sHB}, s{sHB}, {WS_H}")
    e(f"s_lshl_b32 s{sOB}, s{sT[0]}, 5")
    e(f"s_add_u32 s{sOB}, s{sOB}, s{sT[1]}")
    e(f"s_lshl_b32 s{sOB}, s{sOB}, 10")
    e(f"s_add_u32 s{sOB}, s{sOB}, {WS_O}")
    e(f"s_cmp_ge_u32 s{sT[1]}, 2")
    e(f"s_cselect_b32 s{sT[2]}, {OOB}, 0")
    e(f"v_add_u32 v{vHD}, s{sT[2]}, v{vL16}")
    e(f"v_lshrrev_b32 v{T+2}, 3, v0")
    e(f"v_and_b32 v{T+3}, 7, v0")
    e(f"v_lshlrev_b32 v{T+3}, 4, v{T+3}")
    e(f"s_lshr_b32 s{sT[1]}, s{sCB}, 1")
    e(f"s_lshl_b32 s{sT[1]}, s{sT[1]}, 7")
    e(f"v_add_u32 v{T+3}, s{sT[1]}, v{T+3}")
    e(f"v_lshl_add_u32 v{vOUT}, v{T+2}, 10, v{T+3}")
    e(f"v_add_u32 v{vOUT}, s{sT[4]}, v{vOUT}")
    g.vmem(f"buffer_load_dwordx4 {vr(vXR,4)}, v{vOUT}, s[{R_X}:{R_X+3}], 0 offen", "res")
    g.vmem(f"buffer_load_dwordx4 {vr(vB2R,4)}, v{T+3}, s[{R_B2}:{R_B2+3}], 0 offen", "res")
    e(f"v_and_b32 v{vPA}, 15, v{vL}")
    e(f"s_lshl_b32 s{sT[0]}, s{sRB}, 4")
    e(f"v_add_u32 v{vPA}, s{sT[0]}, v{vPA}")
    e(f"v_lshlrev_b32 v{vPA}, 7, v{vPA}")

    NU = 30
    nsh = cfg.nsh
    P_FIRST = 16 - (nsh + 1) // 2
    comp_period = {u: P_FIRST + u // 2 for u in range(nsh)}
    slots = [(65536 + 8192 * i, 1) for i in range(11)]
    ring_extra = []
    for c in (12, 13):
        for h in range(2):
            ring_extra.append((L_X[c % 4] + 8192 * h, c + 2))
    slots += ring_extra
    unit_slot, unit_issue = {}, {}
    free = list(slots)
    per_b = {}
    order = list(range(nsh)) + list(range(nsh, NU))
    late_units = []
    for u in order:
        latest = comp_period[u] - 2 if u in comp_period else 15
        earliest = max(1, latest - 1) if u in comp_period else 1
        free.sort(key=lambda s: s[1])
        placed = False
        for k, (addr, fb) in enumerate(free):
            b = max(fb, earliest)
            while per_b.get(b, 0) >= 3:
                b += 1
            if b <= latest:
                unit_slot[u], unit_issue[u] = addr, b
                per_b[b] = per_b.get(b, 0) + 1
                free.pop(k)
                if u in comp_period:
                    free.append((addr, comp_period[u] + 1))
                placed = True
                break
        if not placed:
            assert u not in comp_period, u
            late_units.append(u)
    cfg.sched = (unit_slot, unit_issue, late_units)

    def dma_unit(u):
        e(f"s_add_u32 m0, s{sW1K}, {unit_slot[u]}")
        if u < 22:
            e(f"s_mov_b32 s{sT[0]}, {u*65536}")
            g.vmem(f"buffer_load_dwordx4 v{vUD}, s[{R_W2}:{R_W2+3}], s{sT[0]} offen lds", ("u", u))
        else:
            e(f"s_mov_b32 s{sT[0]}, {(u-22)*65536}")
            g.vmem(f"buffer_load_dwordx4 v{vUD}, s[{R_WO}:{R_WO+3}], s{sT[0]} offen lds", ("u", u))

    def hreg(u):
        return HF0 + 4 * (u % NHF)

    def load_h(u, reg=None):
        reg = hreg(u) if reg is None else reg
        e(f"s_add_u32 s{sT[0]}, s{sHB}, {u*4096}")
        va = vHD if u == 21 else vL16
        g.vmem(f"buffer_load_dwordx4 {vr(reg,4)}, v{va}, s[{R_WS}:{R_WS+3}], s{sT[0]} offen sc1", ("h", u))

    ua = [LA([vUA[0]], 0), LA([vUA[1]], 0)]

    def unit_reads(u, nt, f):
        o = ua[nt].off(unit_slot[u], 8192)
        g.ds(f"ds_read_b64_tr_b16 {vr(f,2)}, v{vUA[nt]} offset:{o}", ("uw", u, nt))
        g.ds(f"ds_read_b64_tr_b16 {vr(f+2,2)}, v{vUA[nt]} offset:{o+1024}", ("uw", u, nt))

    ufirst = [True, True]

    def unit_mfma(nt, f, act):
        cin = "0" if ufirst[nt] else vr(UACC[nt], 16)
        ufirst[nt] = False
        e(f"v_mfma_f32_32x32x16_bf16 {vr(UACC[nt],16)}, {vr(f,4)}, {vr(act,4)}, {cin}")

    HPOLL_B = P_FIRST - 2
    assert HPOLL_B >= 4 or nsh == 0

    def att_barrier(b):
        tags = [("kv", b)]
        if b == 2:
            tags.append("hst")
        for u, p in comp_period.items():
            if p == b:
                tags += [("u", u), ("h", u)]
        g.wait(vm=tags, lg="all")
        e("s_barrier")
        if b == 2:
            flag_store(1, "flag1")
        if b == HPOLL_B or (nsh == 0 and b == 8):
            poll(vPA, 1, "h")
        if b + 2 < 16 and b >= 1:
            dma_kv(b + 2)
        for u in range(NU):
            if unit_issue.get(u) == b:
                dma_unit(u)
        for u, p in comp_period.items():
            if p - 2 == b:
                load_h(u)

    def rd_k(t):
        c, kt = divmod(t, 4)
        g.ds(f"ds_read_b128 {vr(KF[t%2],4)}, v{vKA} offset:{L_X[c%4]+kt*1024}", ("k", t))

    def rd_v(t):
        c, kt = divmod(t, 4)
        e(f"s_mov_b64 exec, s[{sVM}:{sVM+1}]")
        for s_ in range(2):
            g.ds(f"ds_read_b128 {vr(VF[t%2]+4*s_,4)}, v{vVA} offset:{L_X[c%4]+kt*1024+512*s_}", ("v", t))
        e("s_mov_b64 exec, -1")

    def qk(t, cin=None):
        cin = cin or vr(NM, 16)
        e(f"v_mfma_f32_32x32x16_bf16 {vr(S[t%2],16)}, {vr(KF[t%2],4)}, {vr(Q,4)}, {cin}")

    def pv(t, h):
        e(f"v_smfmac_f32_32x32x32_bf16 {vr(OA,16)}, {vr(VF[t%2]+4*h,4)}, {vr(S[t%2]+8*h,8)}, v{vIDX}")

    def rowmax(src, dst, tmp):
        e(f"v_max3_f32 v{dst}, v{src}, v{src+1}, v{src+2}")
        e(f"v_max3_f32 v{tmp}, v{src+3}, v{src+4}, v{src+5}")
        e(f"v_max3_f32 v{dst}, v{dst}, v{src+6}, v{src+7}")
        e(f"v_max3_f32 v{tmp}, v{tmp}, v{src+8}, v{src+9}")
        e(f"v_max3_f32 v{dst}, v{dst}, v{src+10}, v{src+11}")
        e(f"v_max3_f32 v{tmp}, v{tmp}, v{src+12}, v{src+13}")
        e(f"v_max3_f32 v{dst}, v{dst}, v{src+14}, v{src+15}")
        e(f"v_max_f32 v{dst}, v{dst}, v{tmp}")

    e("s_waitcnt lgkmcnt(0)")
    att_barrier(0)
    stamp("kv0 landed")
    g.ds(f"ds_read_b128 {vr(Q,4)}, v{T+1}", "q")
    rd_k(0)
    rd_k(1)
    rd_v(0)
    g.wait(lg=["q", ("k", 0)])
    e(f"v_mfma_f32_32x32x16_bf16 {vr(S[1],16)}, {vr(KF[0],4)}, {vr(Q,4)}, 0")
    rowmax(S[1], T, T + 1)
    e(f"v_mov_b32 v{T+1}, v{T}")
    e(f"v_permlane32_swap_b32 v{T}, v{T+1}")
    e(f"v_max_f32 v{T}, v{T}, v{T+1}")
    margin = -1000.0 if cfg.force_fallback else cfg.margin
    e(f"v_sub_f32 v{NM}, {f32(-margin)}, v{T}")
    e(f"v_mov_b32 v{NM+1}, v{NM}")
    for r in range(2, 16, 2):
        e(f"v_mov_b64 {vr(NM+r,2)}, {vr(NM,2)}")
    qk(0)
    job_rd, job_mf = {}, {}
    for u, p in comp_period.items():
        for nt in range(2):
            tau = 4 * p - 2 + 2 * (u % 2) + nt
            job_rd[tau] = (u, nt)
            job_mf[tau + 1] = (u, nt)
    stamp("att start")
    for t in range(64):
        X = S[t % 2]
        if t % 4 == 2 and t // 4 + 1 < 16:
            att_barrier(t // 4 + 1)
        e(f"s_setprio {3 - ((t + 2) % 4)}")
        for x in range(16):
            e(f"v_exp_f32 v{X+x}, v{X+x}")
            if x == 1:
                if t > 0:
                    pv(t - 1, 1)
                if t + 1 < 64:
                    rd_v(t + 1)
            if x == 4 and t + 1 < 64:
                g.wait(lg=("k", t + 1))
                qk(t + 1)
                if t + 2 < 64:
                    rd_k(t + 2)
            if x == 6 and t in job_rd:
                u, nt = job_rd[t]
                unit_reads(u, nt, UW[t % 2])
            if x == 9:
                g.wait(lg=("v", t))
                pv(t, 0)
            if x == 13 and t in job_mf:
                u, nt = job_mf[t]
                g.wait(lg=("uw", u, nt))
                unit_mfma(nt, UW[(t - 1) % 2], hreg(u))
    pv(63, 1)
    e("s_setprio 0")
    stamp("att loop done")
    def check_and(label):
        e(f"v_mul_f32 v{T}, {f32(256.0)}, v{OA+8}")
        e(f"v_mul_f32 v{T}, 0, v{T}")
        for r in range(0, 8):
            e(f"v_fma_f32 v{T}, 0, v{OA+r}, v{T}")
        e(f"v_add_f32 v{T}, v{T}, v{OA+8}")
        e(f"v_cmp_nge_f32 vcc, v{T}, v{T+1}")
        e(f"s_cbranch_vccnz {label}")

    e(f"v_mov_b32 v{T+1}, {f32(2.0**-100)}")
    check_and("L_fallback")
    e("L_att_fin:")
    e(f"v_rcp_f32 v{T}, v{OA+8}")
    e(f"s_lshl_b32 s{sT[0]}, s{sRB}, 2")
    e(f"s_add_u32 s{sT[0]}, s{sT[0]}, s{sMI}")
    e(f"s_lshl_b32 s{sT[0]}, s{sT[0]}, 5")
    e(f"s_lshl_b32 s{sT[1]}, s{sCB}, 1")
    e(f"s_add_u32 s{sT[0]}, s{sT[0]}, s{sT[1]}")
    e(f"s_add_u32 s{sT[0]}, s{sT[0]}, s{sG}")
    e(f"s_lshl_b32 s{sT[0]}, s{sT[0]}, 10")
    e(f"s_add_u32 s{sT[0]}, s{sT[0]}, {WS_O}")
    for r in range(8):
        e(f"v_mul_f32 v{OA+r}, v{T}, v{OA+r}")
    for r in range(4):
        e(f"v_cvt_pk_bf16_f32 v{T+4+r}, v{OA+2*r}, v{OA+2*r+1}")
    g.vmem(f"buffer_store_dwordx4 {vr(T+4,4)}, v{vL16}, s[{R_WS}:{R_WS+3}], s{sT[0]} offen sc1", "ost")
    stamp("o stored")
    if cfg.stop == "att":
        e("s_branch L_finish")

    rem = list(range(nsh, 22))
    TH = 128
    assert len(rem) <= 22
    for k, u in enumerate(rem):
        load_h(u, TH + 4 * k)
    g.wait(vm=lambda t: isinstance(t, tuple) and t[0] == "u", lg="all")
    e("s_barrier")
    tail_free = [L_X[2], L_X[2] + 8192, L_X[3], L_X[3] + 8192] + [a for a, fb in free]
    for u in late_units:
        unit_slot[u] = tail_free.pop(0)
        dma_unit(u)
    flagged = [False]

    def tail_units(units, actreg, pre=None):
        jobs = [(u, nt) for u in units for nt in range(2)]
        D = 3
        for k in range(min(D, len(jobs))):
            unit_reads(*jobs[k], UW[k % 4])
        for k, (u, nt) in enumerate(jobs):
            if k + D < len(jobs):
                unit_reads(*jobs[k + D], UW[(k + D) % 4])
            if nt == 0 and pre:
                pre(u)
            g.wait(lg=("uw", u, nt))
            unit_mfma(nt, UW[k % 4], actreg(u))

    early = [u for u in rem if u not in late_units]
    tail_units(early, lambda u: TH + 4 * rem.index(u), lambda u: g.wait(vm=("h", u)))
    g.wait(vm="all", lg="all")
    e("s_barrier")
    flag_store(2, "flag2")
    stamp("o flag")
    tail_units([u for u in rem if u in late_units], lambda u: TH + 4 * rem.index(u))
    g.wait(vm="all")
    poll(vPA, 2, "o")
    stamp("o flags seen")
    OF = 216
    for k in range(8):
        e(f"s_add_u32 s{sT[0]}, s{sOB}, {k*4096}")
        g.vmem(f"buffer_load_dwordx4 {vr(OF+4*k,4)}, v{vL16}, s[{R_WS}:{R_WS+3}], s{sT[0]} offen sc1", ("o", k))
    e(f"s_cmp_eq_u32 s{sLID}, 0")
    e(f"s_cselect_b32 s{sT[0]}, {WS_TAG}, {OOB}")
    g.vmem(f"buffer_store_dword v{vTAG}, v{vFST}, s[{R_WS}:{R_WS+3}], s{sT[0]} offen sc1", "tagst")
    tail_units(list(range(22, 30)), lambda u: OF + 4 * (u - 22), lambda u: g.wait(vm=("o", u - 22)))
    stamp("wo done")
    e(f"v_and_b32 v{T}, 31, v{vL}")
    e(f"s_and_b32 s{sT[0]}, s{sW}, 1")
    e(f"s_lshl_b32 s{sT[0]}, s{sT[0]}, 5")
    e(f"s_lshr_b32 s{sT[1]}, s{sW}, 1")
    e(f"s_lshl_b32 s{sT[1]}, s{sT[1]}, 6")
    e(f"s_add_u32 s{sT[0]}, s{sT[0]}, s{sT[1]}")
    e(f"v_add_u32 v{T}, s{sT[0]}, v{T}")
    e(f"v_mul_u32_u24 v{T}, 272, v{T}")
    e(f"v_lshrrev_b32 v{T+1}, 5, v{vL}")
    e(f"v_lshl_add_u32 v{T}, v{T+1}, 4, v{T}")
    e(f"v_lshrrev_b32 v{T+2}, 3, v0")
    e(f"v_mul_u32_u24 v{T+2}, 272, v{T+2}")
    e(f"v_and_b32 v{T+3}, 7, v0")
    e(f"v_lshl_add_u32 v{T+2}, v{T+3}, 5, v{T+2}")
    g.wait(lg="all")
    e("s_barrier")
    for nt in range(2):
        for q4 in range(4):
            g.ds(f"ds_write_b128 v{T}, {vr(UACC[nt]+4*q4,4)} offset:{128*nt+32*q4}", "red")
    RES = 104
    g.wait(vm="res")
    for r in range(4):
        e(f"v_lshlrev_b32 v{RES+2*r}, 16, v{vXR+r}")
        e(f"v_and_b32 v{RES+2*r+1}, s{MSK}, v{vXR+r}")
        e(f"v_lshlrev_b32 v{T+4}, 16, v{vB2R+r}")
        e(f"v_and_b32 v{T+5}, s{MSK}, v{vB2R+r}")
        e(f"v_add_f32 v{RES+2*r}, v{RES+2*r}, v{T+4}")
        e(f"v_add_f32 v{RES+2*r+1}, v{RES+2*r+1}, v{T+5}")
    g.wait(lg="all")
    e("s_barrier")
    RB_ = 128
    for k in range(4):
        for h in range(2):
            g.ds(f"ds_read_b128 {vr(RB_+8*k+4*h,4)}, v{T+2} offset:{k*64*272+16*h}", ("r", k))
    for k in range(4):
        g.wait(lg=("r", k))
        for r in range(8):
            e(f"v_add_f32 v{RES+r}, v{RES+r}, v{RB_+8*k+r}")
    for r in range(4):
        e(f"v_cvt_pk_bf16_f32 v{T+4+r}, v{RES+2*r}, v{RES+2*r+1}")
    e(f"buffer_store_dwordx4 {vr(T+4,4)}, v{vOUT}, s[{R_OUT}:{R_OUT+3}], 0 offen")
    e("L_finish:")
    if cfg.prof:
        e("s_waitcnt vmcnt(0)")
        stamp("end")
        e(f"s_memrealtime s[{sPT}:{sPT+1}]")
        e("s_waitcnt lgkmcnt(0)")
        e(f"v_writelane_b32 v{vPROF}, s{sPT}, 62")
        e(f"s_lshl_b32 s{sT[0]}, s2, 11")
        e(f"s_add_u32 s{sT[0]}, s{sT[0]}, {WS_PROF}")
        e(f"v_lshlrev_b32 v{T}, 2, v0")
        e(f"buffer_store_dword v{vPROF}, v{T}, s[{R_WS}:{R_WS+3}], s{sT[0]} offen")
    e("L_exit:")
    e("s_endpgm")

    if True:
        e("L_fallback:")
        e("s_waitcnt vmcnt(0) lgkmcnt(0)")
        e(f"s_sub_u32 s{sT[0]}, s{sKVC}, s{sW2K}")
        e(f"v_mov_b32 v{T+2}, 0xff800000")
        e(f"s_mov_b32 s{sCNT}, 0")
        e("L_fb1:")
        e(f"s_lshr_b32 s{sT[1]}, s{sCNT}, 2")
        e(f"s_lshl_b32 s{sT[1]}, s{sT[1]}, 14")
        e(f"s_and_b32 s{sT[2]}, s{sCNT}, 3")
        e(f"s_lshl_b32 s{sT[2]}, s{sT[2]}, 10")
        e(f"s_add_u32 s{sT[1]}, s{sT[1]}, s{sT[2]}")
        e(f"s_add_u32 s{sT[1]}, s{sT[1]}, s{sT[0]}")
        e(f"buffer_load_dwordx4 {vr(KF[0],4)}, v{vKA}, s[{R_WS}:{R_WS+3}], s{sT[1]} offen sc1")
        e("s_waitcnt vmcnt(0)")
        e(f"v_mfma_f32_32x32x16_bf16 {vr(S[0],16)}, {vr(KF[0],4)}, {vr(Q,4)}, 0")
        rowmax(S[0], T, T + 1)
        e(f"v_max_f32 v{T+2}, v{T+2}, v{T}")
        e(f"s_add_u32 s{sCNT}, s{sCNT}, 1")
        e(f"s_cmp_lt_u32 s{sCNT}, 64")
        e("s_cbranch_scc1 L_fb1")
        e(f"v_mov_b32 v{T+1}, v{T+2}")
        e(f"v_permlane32_swap_b32 v{T+2}, v{T+1}")
        e(f"v_max_f32 v{T}, v{T+2}, v{T+1}")
        for r in range(16):
            e(f"v_sub_f32 v{NM+r}, 0, v{T}")
            e(f"v_mov_b32 v{OA+r}, 0")
        e(f"s_mov_b32 s{sCNT}, 0")
        e("L_fb2:")
        e(f"s_lshr_b32 s{sT[1]}, s{sCNT}, 2")
        e(f"s_lshl_b32 s{sT[1]}, s{sT[1]}, 14")
        e(f"s_and_b32 s{sT[2]}, s{sCNT}, 3")
        e(f"s_lshl_b32 s{sT[2]}, s{sT[2]}, 10")
        e(f"s_add_u32 s{sT[1]}, s{sT[1]}, s{sT[2]}")
        e(f"s_add_u32 s{sT[1]}, s{sT[1]}, s{sT[0]}")
        e("s_nop 7")
        e(f"buffer_load_dwordx4 {vr(KF[0],4)}, v{vKA}, s[{R_WS}:{R_WS+3}], s{sT[1]} offen sc1")
        e(f"s_mov_b64 exec, s[{sVM}:{sVM+1}]")
        e(f"buffer_load_dwordx4 {vr(VF[0],4)}, v{vVA}, s[{R_WS}:{R_WS+3}], s{sT[1]} offen sc1")
        e(f"buffer_load_dwordx4 {vr(VF[0]+4,4)}, v{vVA}, s[{R_WS}:{R_WS+3}], s{sT[1]} offen offset:512 sc1")
        e("s_mov_b64 exec, -1")
        e("s_waitcnt vmcnt(0)")
        qk(0)
        for x in range(16):
            e(f"v_exp_f32 v{S[0]+x}, v{S[0]+x}")
        pv(0, 0)
        pv(0, 1)
        e(f"s_add_u32 s{sCNT}, s{sCNT}, 1")
        e(f"s_cmp_lt_u32 s{sCNT}, 64")
        e("s_cbranch_scc1 L_fb2")
        e("s_nop 15")
        e("s_branch L_att_fin")
    e("L_code_end:")

    rep = []
    body = pad_hazards(g.lines, rep)
    cfg.nops = rep
    head = f"""; Fused LayerNorm + full softmax MHA (32 heads x 16) + squared-ReLU FFN + residual, one persistent launch.
; kernarg: 0 x, 8 wqkv, 16 wo, 24 (unused), 32 w1, 40 b1, 48 w2, 56 b2, 64 out, 72 debug, 80 ws
; @launch grid=(256,1,1) block=(512,1,1) lds={LDS_BYTES}
.amdgcn_target "amdgcn-amd-amdhsa--gfx950"
.text
.globl {NAME}_kernel
.p2align 8
.type {NAME}_kernel,@function
{NAME}_kernel:
"""
    tail = f"""
.section .rodata,"a"
.p2align 6
.amdhsa_kernel {NAME}_kernel
  .amdhsa_next_free_vgpr 256
  .amdhsa_next_free_sgpr 102
  .amdhsa_accum_offset 256
  .amdhsa_group_segment_fixed_size 0
  .amdhsa_kernarg_size 88
  .amdhsa_user_sgpr_count 2
  .amdhsa_user_sgpr_kernarg_segment_ptr 1
  .amdhsa_system_sgpr_workgroup_id_x 1
.end_amdhsa_kernel
"""
    return head + "\n".join(body) + tail


def make(**kw):
    cfg = Cfg()
    for k, v in kw.items():
        setattr(cfg, k, v)
    return build(cfg), cfg


if __name__ == "__main__":
    kw = {}
    out = f"cdna_kernels/{NAME}.s"
    for a in sys.argv[1:]:
        k, v = a.split("=", 1)
        if k == "out":
            out = v
        else:
            try:
                v = eval(v)
            except Exception:
                pass
            kw[k] = v
    asm, cfg = make(**kw)
    open(out, "w").write(asm)
    print("wrote", out, len(asm), "bytes;", "nops inserted:", len(cfg.nops), sum(k for k, _ in cfg.nops))
    if hasattr(cfg, "sched"):
        print("unit slots/issue/late:", cfg.sched)
```
